```python
import torch

def _softmax(x, axis=-1):
    return torch.softmax(x, dim=axis)
def _gelu(x):
    return torch.nn.functional.gelu(x, approximate="tanh")
def _silu(x):
    return torch.nn.functional.silu(x)
def _sigmoid(x):
    return torch.sigmoid(x)
def _layernorm(x, axis=-1, eps=1e-5):
    m = x.mean(dim=axis, keepdim=True)
    v = x.var(dim=axis, keepdim=True, unbiased=False)
    return (x - m) / torch.sqrt(v + eps)
def _scatter_add(tgt, idx, src, axis=0):
    return tgt.clone().index_add_(axis, idx, src)
def _segment_sum(src, seg, n):
    out = torch.zeros((n,) + src.shape[1:], dtype=src.dtype)
    return out.index_add_(0, seg, src)
def _pad(x, pw):
    flat = tuple(v for pair in reversed(pw) for v in pair)
    return torch.nn.functional.pad(x, flat)

kernel_name = 'interleave_layers__linear_kernel_hedgehog__sliding_block__prompt'

def setup_inputs():

    _w = (lambda a: (lambda t: t.to(torch.bfloat16) if t.is_floating_point() else t)(torch.as_tensor(a)))
    def _A_setup():
        B, S, D, H = 1, 2048, 448, 16
        Dh = D // H
        return {
            "x": _w((lambda *s: torch.randn(*s, dtype=torch.bfloat16) * 0.05)(B, S, D)),
            "wqkv": _w((lambda *s: torch.randn(*s, dtype=torch.bfloat16) * 0.4)(D, 3 * D)),
            "w_phi": _w((lambda *s: torch.randn(*s, dtype=torch.bfloat16) * 0.4)(H, Dh, Dh) * (Dh ** -0.5)),
            "wo": _w((lambda *s: torch.randn(*s, dtype=torch.bfloat16) * 0.05)(D, D)),
        }
    _A_in = _A_setup()

    def _B_setup():
        B, S, D = 1, 2048, 448
        return {
            "x": _w((lambda *s: torch.randn(*s, dtype=torch.bfloat16) * 0.05)(B, S, D)),
            "wqkv": _w((lambda *s: torch.randn(*s, dtype=torch.bfloat16) * 0.1)(D, 3 * D)),
            "wo": _w((lambda *s: torch.randn(*s, dtype=torch.bfloat16) * 0.05)(D, D)),
        }
    _B_in = _B_setup()

    return {
        "A_x": _A_in["x"],
        "A_wqkv": _A_in["wqkv"],
        "A_w_phi": _A_in["w_phi"],
        "A_wo": _A_in["wo"],
        "B_x": _B_in["x"],
        "B_wqkv": _B_in["wqkv"],
        "B_wo": _B_in["wo"],
    }

def reference(A_x, A_wqkv, A_w_phi, A_wo, B_x, B_wqkv, B_wo):
    def _A_ref(x, wqkv, w_phi, wo):
        B, S, D = x.shape
        H = 16; Dh = D // H
        qkv = (lambda x, *d: x.permute(*d))((x @ wqkv).reshape(B, S, 3, H, Dh), 2, 0, 3, 1, 4)
        q, k, v = qkv[0], qkv[1], qkv[2]
        pq = torch.einsum("bhsd,hdf->bhsf", q, w_phi)
        pk = torch.einsum("bhsd,hdf->bhsf", k, w_phi)
        phi_q = torch.concatenate([_softmax(pq, axis=-1), _softmax(-pq, axis=-1)], axis=-1)
        phi_k = torch.concatenate([_softmax(pk, axis=-1), _softmax(-pk, axis=-1)], axis=-1)
        kv = torch.einsum("bhsf,bhsd->bhfd", phi_k, v)
        z  = torch.einsum("bhsf->bhf", phi_k)
        num = torch.einsum("bhqf,bhfd->bhqd", phi_q, kv)
        den = torch.einsum("bhqf,bhf->bhq", phi_q, z)[..., None] + 1e-6
        o = num / den
        return (lambda x, *d: x.permute(*d))(o, 0, 2, 1, 3).reshape(B, S, D) @ wo

    def _B_ref(x, wqkv, wo):
        B, S, D = x.shape
        H = 16; Dh = D // H; W = 256
        qkv = (lambda x, *d: x.permute(*d))((x @ wqkv).reshape(B, S, 3, H, Dh), 2, 0, 3, 1, 4)
        q, k, v = qkv[0], qkv[1], qkv[2]
        scores = torch.einsum("bhqd,bhkd->bhqk", q, k) * (Dh ** -0.5)
        idx = torch.arange(S)
        mask = (idx[:, None] - idx[None, :] >= 0) & (idx[:, None] - idx[None, :] < W)
        scores = torch.where(mask[None, None], scores, -1e9)
        p = _softmax(scores, axis=-1)
        o = torch.einsum("bhqk,bhkd->bhqd", p, v)
        return (lambda x, *d: x.permute(*d))(o, 0, 2, 1, 3).reshape(B, S, D) @ wo

    x = A_x
    x = x + _A_ref(_layernorm(x, axis=-1), A_wqkv, A_w_phi, A_wo)
    x = x + _B_ref(_layernorm(x, axis=-1), B_wqkv, B_wo)
    x = x + _A_ref(_layernorm(x, axis=-1), A_wqkv, A_w_phi, A_wo)
    x = x + _B_ref(_layernorm(x, axis=-1), B_wqkv, B_wo)
    return x
```

```python
import re

REG_RE = re.compile(r'(?<![\w.])([vas])(?:(\d+)|\[(\d+):(\d+)\])(?![\w])')

def regs_of(tok):
    out = set()
    for m in REG_RE.finditer(tok):
        k = m.group(1)
        if m.group(2) is not None:
            out.add((k, int(m.group(2))))
        else:
            for i in range(int(m.group(3)), int(m.group(4)) + 1):
                out.add((k, i))
    if re.search(r'\bvcc\b', tok): out |= {('s', 'vcc')}
    if re.search(r'\bexec\b', tok): out |= {('s', 'exec')}
    if re.search(r'\bm0\b', tok): out |= {('s', 'm0')}
    return out

TRANS = ('v_exp_f32', 'v_log_f32', 'v_rcp_f32', 'v_rsq_f32', 'v_sqrt_f32', 'v_sin_f32', 'v_cos_f32', 'v_rcp_iflag_f32')

class Ins:
    __slots__ = ('text', 'mn', 'ops', 'cls', 'wr', 'rd', 'srcc', 'ab', 'passes', 'states', 'is_label', 'wide_store', 'data', 'dpp', 'sdwa')
    def __init__(self, text):
        self.text = text
        t = text.split(';')[0].strip()
        self.is_label = t.endswith(':') or t.startswith('.')
        self.wr = set(); self.rd = set(); self.srcc = set(); self.ab = set(); self.passes = 0
        self.states = 1; self.cls = 'other'; self.wide_store = False; self.data = set(); self.dpp = False; self.sdwa = False
        if self.is_label or not t:
            self.mn = ''; self.ops = []; self.states = 0; self.cls = 'label'; return
        parts = t.split(None, 1)
        mn = self.mn = parts[0]
        rest = parts[1] if len(parts) > 1 else ''
        ops = [o.strip() for o in re.split(r',(?![^\[]*\])', rest)] if rest else []
        self.ops = ops
        R = [regs_of(o) for o in ops]
        allr = set().union(*R) if R else set()
        if mn == 's_nop':
            self.states = int(ops[0], 0) + 1; self.cls = 'salu'; return
        if mn.startswith('v_mfma'):
            self.cls = 'mfma'
            self.wr = R[0]; self.ab = R[1] | R[2]; self.srcc = R[3]; self.rd = self.ab | self.srcc
            self.passes = 8 if '32x32x16' in mn else 4 if '16x16x32' in mn else None
            assert self.passes, mn
            return
        if mn.startswith('v_'):
            self.cls = 'valu'
            self.dpp = '_dpp' in mn or 'row_' in rest or 'quad_perm' in rest
            self.sdwa = '_sdwa' in mn or 'op_sel' in rest and not mn.startswith('v_pk')
            if mn.startswith('v_permlane') and 'swap' in mn:
                self.wr = R[0] | R[1]; self.rd = R[0] | R[1]
            elif mn.startswith('v_cmp'):
                self.wr = R[0]; self.rd = set().union(*R[1:])
                if mn.startswith('v_cmpx'): self.wr |= {('s', 'exec')}
            elif re.match(r'v_(add|sub|subrev)_co_u32|v_(addc|subb|subbrev)_co_u32|v_div_scale|v_mad_u64_u32', mn):
                self.wr = R[0] | R[1]; self.rd = set().union(*R[2:])
            elif mn in ('v_nop',):
                pass
            else:
                self.wr = R[0]; self.rd = set().union(*R[1:]) if len(R) > 1 else set()
                if re.match(r'v_(fmac|dot2c|pk_fmac|mac|dot4c|dot8c)', mn) or mn.startswith('v_writelane') or self.dpp or '_sdwa' in mn:
                    self.rd |= R[0]
                if mn.startswith('v_cndmask') and len(ops) == 3: self.rd |= {('s', 'vcc')}
            return
        if mn.startswith('ds_'):
            self.cls = 'ds'
            if mn.startswith('ds_read') or mn.startswith('ds_bpermute') or mn.startswith('ds_permute') or mn.startswith('ds_swizzle'):
                self.wr = R[0]; self.rd = set().union(*R[1:])
            else:
                self.rd = allr
            return
        if mn.startswith('buffer_') or mn.startswith('global_'):
            self.cls = 'vmem'
            lds = bool(re.search(r'\blds\b', rest)) or '_lds_' in mn
            if mn in ('buffer_inv', 'buffer_wbl2'):
                return
            if 'load' in mn and not lds:
                self.wr = R[0]; self.rd = set().union(*R[1:])
                if 'd16' in mn: self.rd |= R[0]
            elif 'atomic' in mn and re.search(r'\bsc0\b', rest):
                self.wr = R[0]; self.rd = allr
            else:
                self.rd = allr
                if lds: self.rd |= {('s', 'm0')}
                if 'store' in mn and ('x4' in mn or 'x3' in mn):
                    self.wide_store = True
                    self.data = R[0] if mn.startswith('buffer_') else R[1]
            return
        if mn.startswith('s_'):
            self.cls = 'salu'
            if mn.startswith(('s_load', 's_buffer_load', 's_memtime', 's_memrealtime')):
                self.cls = 'smem'; self.wr = R[0]; self.rd = set().union(*R[1:]) if len(R) > 1 else set()
            elif mn.startswith(('s_cmp', 's_cbranch', 's_branch', 's_waitcnt', 's_barrier', 's_endpgm', 's_sleep', 's_setprio', 's_bitcmp', 's_setpc')):
                self.rd = allr
                if 'vcc' in mn: self.rd |= {('s', 'vcc')}
                if 'exec' in mn: self.rd |= {('s', 'exec')}
            else:
                self.wr = R[0] if R else set(); self.rd = set().union(*R[1:]) if len(R) > 1 else set()
                if 'saveexec' in mn: self.wr |= {('s', 'exec')}; self.rd |= {('s', 'exec')}
            return
        raise ValueError("unknown instruction: " + text)

def vec(s): return {r for r in s if r[0] in 'va'}
def sca(s): return {r for r in s if r[0] == 's'}

XDL_RD = {4: 8, 8: 12}
XDL_COVL = {4: 6, 8: 10}
XDL_WAR = {4: 3, 8: 7}

def need(p, c):
    n = 0
    if p.cls == 'valu':
        pv = vec(p.wr); ps = sca(p.wr)
        if c.cls == 'mfma' and pv & c.rd: n = max(n, 2)
        if c.cls == 'mfma' and ('s', 'exec') in ps: n = max(n, 4)
        if c.cls == 'vmem' and ps & c.rd: n = max(n, 5)
        if c.cls == 'valu':
            if ps & c.rd:
                n = max(n, 4 if c.mn.startswith(('v_readlane', 'v_writelane')) else 2)
            if pv & c.rd:
                if c.dpp: n = max(n, 2)
                if c.mn.startswith('v_permlane'): n = max(n, 2)
                if c.mn.startswith(('v_readlane', 'v_readfirstlane')): n = max(n, 1)
                if p.mn in TRANS and c.mn not in TRANS: n = max(n, 1)
                if p.sdwa: n = max(n, 1)
                if p.mn.startswith('v_dot') and not (c.mn == p.mn and not (pv & (c.rd - c.wr))): n = max(n, 3)
            if p.mn.startswith('v_dot') and pv & c.wr and c.mn != p.mn: n = max(n, 3)
        if p.mn.startswith('v_dot') and c.cls in ('mfma', 'ds', 'vmem') and pv & c.rd: n = max(n, 3)
        if p.mn in TRANS and c.cls in ('ds', 'vmem') and pv & c.rd: n = max(n, 1)
        if c.cls in ('salu', 'smem') and ps & c.rd: n = max(n, 1)
    if p.cls == 'mfma':
        d = p.wr
        if c.cls == 'mfma':
            if d & c.ab: n = max(n, XDL_RD[p.passes])
            if d & c.srcc:
                if not (c.srcc == d and c.passes == p.passes): n = max(n, XDL_COVL[p.passes])
            elif d & c.wr:
                n = max(n, XDL_COVL[p.passes])
        elif c.cls in ('valu', 'ds', 'vmem'):
            if d & (c.rd | c.wr): n = max(n, XDL_RD[p.passes])
            if c.cls == 'valu' and p.srcc & c.wr: n = max(n, XDL_WAR[p.passes])
            if c.cls in ('ds', 'vmem') and p.srcc & c.wr: n = max(n, XDL_WAR[p.passes])
    if p.cls == 'salu':
        if ('s', 'm0') in p.wr and c.cls in ('vmem', 'ds') and ('s', 'm0') in c.rd: n = max(n, 1)
    if p.wide_store and c.cls == 'valu' and p.data & c.wr: n = max(n, 2)
    if p.wide_store and c.cls in ('ds', 'vmem', 'mfma') and p.data & c.wr: n = max(n, 2)
    return n

class Asm:
    def __init__(self):
        self.out = []
        self.nlab = 0
        self.nops_added = 0
    def __call__(self, text):
        for line in text.split('\n'):
            line = line.strip()
            if not line or line.startswith(';'):
                continue
            self.emit(line)
    def emit(self, line):
        ins = Ins(line)
        if ins.cls != 'label':
            dist = 0; req = 0
            for p in reversed(self.out):
                if p.cls == 'label': continue
                n = need(p, ins)
                if n > dist: req = max(req, n - dist)
                dist += p.states
                if dist >= 20: break
            while req > 0:
                k = min(req, 16)
                self.out.append(Ins(f's_nop {k-1}')); self.nops_added += k
                req -= k
        self.out.append(ins)
    def label(self, name): self.out.append(Ins(name + ':'))
    def newlabel(self, base='L'):
        self.nlab += 1
        return f'{base}_{self.nlab}'
    def flush_hazards(self, n=16):
        self.out.append(Ins(f's_nop {n-1}'))
    def text(self):
        return '\n'.join(('' if i.cls == 'label' else '    ') + i.text for i in self.out) + '\n'

def vr(base, n=1, k='v'):
    return f'{k}{base}' if n == 1 else f'{k}[{base}:{base+n-1}]'
def ar(base, n=1): return vr(base, n, 'a')
def sr(base, n=1): return vr(base, n, 's')
```

```python
import sys, math, struct
from asmlib import Asm, vr, ar, sr

NAME = "interleave_layers__linear_kernel_hedgehog__sliding_block__prompt"

OPT = dict(stamps=False, force_slow=False, stop_after=None)
for a in sys.argv[2:]:
    k, _, v = a.partition('=')
    OPT[k] = (v if v else True)

KB = 1024
TILE = 28 * KB
WF_HEAD = 84 * KB
off = 0
def alloc(n):
    global off
    o = off; off += (n + 4095) // 4096 * 4096
    return o
WFA = alloc(16 * WF_HEAD)
WFB = alloc(16 * WF_HEAD)
WOA = alloc(14 * TILE)
WOB = alloc(14 * TILE)
XSLOT = 64 * TILE + 64 * 4096
XST = 64 * TILE
XF = [alloc(XSLOT) for _ in range(4)]
OSLOT = 64 * TILE
OF = [alloc(OSLOT) for _ in range(4)]
KVP = [alloc(16 * 16 * 16 * 512) for _ in range(2)]
KVR = [alloc(16 * 4096) for _ in range(2)]
KF = [alloc(64 * 16 * 2048) for _ in range(2)]
VF = [alloc(64 * 16 * 2048) for _ in range(2)]
DBG = alloc(256 * 4 * 256)
WS_USED = off
assert XF[1] - XF[0] == XF[2] - XF[1] and OF[1] - OF[0] == OF[2] - OF[1]

L_W = 0
L_KV = 86016
L_V = L_KV
L_K = L_KV + 24576
L_SM = L_KV
L_RED = L_KV + 16384
L_O = 135168
LDS_BYTES = 163840

LOG2E = 1.4426950408889634
def f32(x): return struct.unpack('<I', struct.pack('<f', x))[0]
SPIN_MAX = 200000

S_ID, S_W, S_RB, S_H, S_FAST, S_IT = 2, 3, 4, 5, 6, 7
SRD_WS, SRD_T, SRD_DBG = 8, 12, 16
S_T = 20
S_HF = 32
S_RT28 = 34
S_G = 35
S_RTO28 = 39
S_CT = 40
S_X = 41
S_O = 42
S_KVP, S_KVR, S_KF, S_VF = 43, 44, 45, 46
S_SPIN = 47
S_EPS = 48
S_C1, S_C2 = 49, 50
S_EXEC = 52
S_PADM = 54
S_L28 = 56
S_WFH = 58
S_RTST = 59
S_RTOST = 60
S_STAMP = 64
NSTAMP = 36

V_L16 = 1
V_LANE = 2
V_WG = 3
V_OO = 7
V_L8 = 11
V_TMP = 12
A_WOA, A_WOB, A_XR, A_PHI, A_ID = 0, 112, 224, 232, 240

A = Asm()
stamp_names = []
def stamp(name):
    if not OPT['stamps']: return
    i = len(stamp_names); stamp_names.append(name)
    A(f"s_memtime s[{S_T+8}:{S_T+9}]")
    A("s_waitcnt lgkmcnt(0)")
    if name.startswith('L:'):
        lab = A.newlabel('st')
        A(f"s_cmp_eq_u32 s{S_IT}, 0")
        A(f"s_cselect_b32 s{S_STAMP+i}, s{S_T+8}, s{S_STAMP+i}")
        A(f"s_cselect_b32 s{S_STAMP+i+14}, s{S_STAMP+i+14}, s{S_T+8}")
    else:
        A(f"s_mov_b32 s{S_STAMP+i}, s{S_T+8}")

def spin_check(lab_fail="L_exit"):
    A(f"s_add_u32 s{S_SPIN}, s{S_SPIN}, 1")
    A(f"s_cmp_gt_u32 s{S_SPIN}, {SPIN_MAX}")
    A(f"s_cbranch_scc1 {lab_fail}")

def mfma(d, a, b, c):
    A(f"v_mfma_f32_32x32x16_bf16 {d}, {a}, {b}, {c}")

def set_srd(srd, karg_off, nbytes):
    A(f"s_load_dwordx2 s[{srd}:{srd+1}], s[0:1], {karg_off}")
    A(f"s_mov_b32 s{srd+2}, {nbytes}")
    A(f"s_mov_b32 s{srd+3}, 0x20000")

def local_stores(emit):
    ls, le = A.newlabel('ls'), A.newlabel('le')
    A(f"s_cmp_eq_u32 s{S_FAST}, 0")
    A(f"s_cbranch_scc1 {ls}")
    emit("")
    A(f"s_branch {le}")
    A.label(ls)
    emit("sc1")
    A.label(le)
    A("s_nop 1")

WS = f"s[{SRD_WS}:{SRD_WS+3}]"
TS = f"s[{SRD_T}:{SRD_T+3}]"
DB = f"s[{SRD_DBG}:{SRD_DBG+3}]"
HF = f"s[{S_HF}:{S_HF+1}]"

def stop_here(tag):
    if OPT['stop_after'] == tag:
        A("s_waitcnt vmcnt(0) lgkmcnt(0)")
        A("s_branch L_exit")

def setup():
    A(f"s_cmp_ge_u32 s{S_ID}, 256")
    A("s_cbranch_scc1 L_end")
    set_srd(SRD_WS, 72, WS_USED)
    set_srd(SRD_DBG, 64, 256)
    A(f"v_lshrrev_b32 v{V_TMP}, 6, v0")
    A(f"v_and_b32 v{V_LANE}, 63, v0")
    A(f"v_readfirstlane_b32 s{S_W}, v{V_TMP}")
    A(f"v_lshlrev_b32 v{V_L16}, 4, v{V_LANE}")
    A(f"v_lshlrev_b32 v{V_L8}, 3, v{V_LANE}")
    A(f"s_mov_b32 s{S_SPIN}, 0")
    A(f"s_mov_b32 s{S_IT}, 0")
    if OPT['stamps']:
        for i in range(NSTAMP): A(f"s_mov_b32 s{S_STAMP+i}, 0")
    stamp('start')
    A(f"s_and_b32 s{S_RB}, s{S_ID}, 7")
    A(f"s_lshl_b32 s{S_RB}, s{S_RB}, 1")
    A(f"s_bfe_u32 s{S_T}, s{S_ID}, 0x10003")
    A(f"s_or_b32 s{S_RB}, s{S_RB}, s{S_T}")
    A(f"s_lshr_b32 s{S_H}, s{S_ID}, 4")
    A(f"s_mov_b32 s{S_HF}, 0")
    A(f"s_mov_b32 s{S_HF+1}, -1")
    A(f"s_mov_b32 s{S_PADM}, 0xf0000000")
    A(f"s_mov_b32 s{S_PADM+1}, 0xf0000000")
    A(f"s_mov_b32 s{S_L28}, 0x10000000")
    A(f"s_mov_b32 s{S_L28+1}, 0x10000000")
    A(f"s_lshl_b32 s{S_T}, s{S_RB}, 2")
    A(f"s_add_u32 s{S_T+1}, s{S_T}, s{S_W}")
    A(f"s_mul_i32 s{S_RT28}, s{S_T+1}, {TILE}")
    A(f"s_lshl_b32 s{S_RTST}, s{S_T+1}, 12")
    for g in range(4):
        A(f"s_add_u32 s{S_G+g}, s{S_W}, {g}")
        A(f"s_and_b32 s{S_G+g}, s{S_G+g}, 3")
        A(f"s_mul_i32 s{S_G+g}, s{S_G+g}, 7168")
        A(f"v_add_u32 v{V_WG+g}, s{S_G+g}, v{V_L16}")
    A(f"s_lshr_b32 s{S_T+2}, s{S_H}, 2")
    A(f"s_add_u32 s{S_T+2}, s{S_T+2}, s{S_T}")
    A(f"s_mul_i32 s{S_RTO28}, s{S_T+2}, {TILE}")
    A(f"s_lshl_b32 s{S_RTOST}, s{S_T+2}, 12")
    A(f"s_and_b32 s{S_T+3}, s{S_H}, 3")
    A(f"s_lshl_b32 s{S_CT}, s{S_T+3}, 2")
    A(f"s_cmp_eq_u32 s{S_T+3}, 3")
    A(f"s_cselect_b32 s{S_CT}, 11, s{S_CT}")
    A(f"s_add_u32 s{S_CT}, s{S_CT}, s{S_W}")
    A(f"s_lshr_b32 s{S_T+3}, s{S_T+3}, 1")
    A(f"s_add_u32 s{S_T+3}, s{S_T+3}, s{S_W}")
    A(f"s_cmp_eq_u32 s{S_T+3}, 4")
    A(f"s_cselect_b32 s{S_CT}, 15, s{S_CT}")
    A(f"s_mul_i32 s{S_WFH}, s{S_H}, {WF_HEAD}")
    A(f"s_mul_i32 s{S_T+4}, s{S_H}, 7")
    A(f"v_lshrrev_b32 v{V_TMP}, 5, v{V_LANE}")
    A(f"v_add_u32 v{V_TMP}, s{S_T+4}, v{V_TMP}")
    A(f"v_and_b32 v{V_TMP+1}, 31, v{V_LANE}")
    A(f"v_lshlrev_b32 v{V_TMP+1}, 4, v{V_TMP+1}")
    A(f"v_and_b32 v{V_TMP+2}, 1, v{V_TMP}")
    A(f"v_lshl_add_u32 v{V_TMP+1}, v{V_TMP+2}, 3, v{V_TMP+1}")
    A(f"v_lshrrev_b32 v{V_TMP}, 1, v{V_TMP}")
    A(f"v_lshl_add_u32 v{V_OO}, v{V_TMP}, 9, v{V_TMP+1}")

def prep():
    T = S_T
    lab_skip = "L_prep_skipw"
    A(f"s_cmp_ge_u32 s{S_ID}, 224")
    A(f"s_cbranch_scc1 {lab_skip}")
    A(f"s_cmp_ge_u32 s{S_ID}, 168")
    A("s_cbranch_scc1 L_prep_wo")
    A(f"s_cmp_ge_u32 s{S_ID}, 84")
    A(f"s_cselect_b32 s{T+8}, 84, 0")
    A(f"s_cselect_b32 s{T+4}, {WFB}, {WFA}")
    A("s_cbranch_scc1 L_prep_qb")
    A(f"s_load_dwordx2 s[{SRD_T}:{SRD_T+1}], s[0:1], 8")
    A("s_branch L_prep_qc")
    A.label("L_prep_qb")
    A(f"s_load_dwordx2 s[{SRD_T}:{SRD_T+1}], s[0:1], 40")
    A.label("L_prep_qc")
    A(f"s_mov_b32 s{SRD_T+2}, {448*2688}")
    A(f"s_sub_u32 s{T+8}, s{S_ID}, s{T+8}")
    A(f"s_cmp_ge_u32 s{T+8}, 28")
    A(f"s_cselect_b32 s{T+9}, 1, 0")
    A(f"s_cmp_ge_u32 s{T+8}, 56")
    A(f"s_cselect_b32 s{T+9}, 2, s{T+9}")
    A(f"s_mul_i32 s{T+10}, s{T+9}, 28")
    A(f"s_sub_u32 s{T+10}, s{T+8}, s{T+10}")
    A(f"s_lshl_b32 s{T+11}, s{T+8}, 10")
    A(f"s_add_u32 s{T+4}, s{T+4}, s{T+11}")
    A(f"s_mov_b32 s{T+5}, {WF_HEAD}")
    A(f"s_mov_b32 s{T+1}, 2688")
    A(f"s_add_u32 s{T+11}, s{T+9}, 1")
    A(f"s_cmp_eq_u32 s{T+9}, 2")
    A(f"s_cselect_b32 s{T+11}, 0, s{T+11}")
    A(f"s_mul_i32 s{T+2}, s{T+11}, 896")
    A(f"s_mul_i32 s{T+11}, s{T+10}, {16*2688}")
    A(f"s_add_u32 s{T+2}, s{T+2}, s{T+11}")
    A(f"s_mov_b32 s{T+3}, 56")
    A(f"s_mov_b32 s{T+6}, 16")
    A(f"s_mov_b32 s{T+7}, 1")
    A("s_branch L_prep_go")
    A.label("L_prep_wo")
    A(f"s_cmp_ge_u32 s{S_ID}, 196")
    A(f"s_mov_b32 s{T+8}, 168")
    A(f"s_mov_b32 s{T+4}, {WOA}")
    A(f"s_cselect_b32 s{T+8}, 196, s{T+8}")
    A(f"s_cselect_b32 s{T+4}, {WOB}, s{T+4}")
    A("s_cbranch_scc1 L_prep_ob")
    A(f"s_load_dwordx2 s[{SRD_T}:{SRD_T+1}], s[0:1], 24")
    A("s_branch L_prep_oc")
    A.label("L_prep_ob")
    A(f"s_load_dwordx2 s[{SRD_T}:{SRD_T+1}], s[0:1], 48")
    A.label("L_prep_oc")
    A(f"s_mov_b32 s{SRD_T+2}, {448*896}")
    A(f"s_sub_u32 s{T+10}, s{S_ID}, s{T+8}")
    A(f"s_lshl_b32 s{T+11}, s{T+10}, 10")
    A(f"s_add_u32 s{T+4}, s{T+4}, s{T+11}")
    A(f"s_mov_b32 s{T+5}, {TILE}")
    A(f"s_mov_b32 s{T+1}, 896")
    A(f"s_mul_i32 s{T+2}, s{T+10}, {16*896}")
    A(f"s_mov_b32 s{T+3}, 64")
    A(f"s_mov_b32 s{T+6}, 14")
    A(f"s_mov_b32 s{T+7}, 0")
    A.label("L_prep_go")
    A(f"s_mov_b32 s{SRD_T+3}, 0x20000")
    RS = 960
    A(f"s_lshl_b32 s{T+8}, s{S_W}, 2")
    A(f"s_mul_i32 s{T+9}, s{T+8}, s{T+1}")
    A(f"s_add_u32 s{T+9}, s{T+9}, s{T+2}")
    A(f"s_mul_i32 s{T+10}, s{T+8}, {RS}")
    A("s_waitcnt lgkmcnt(0)")
    A("s_mov_b32 exec_lo, -1")
    A("s_mov_b32 exec_hi, 0x00ffffff")
    for r in range(4):
        A(f"s_mov_b32 m0, s{T+10}")
        A(f"buffer_load_dwordx4 v{V_L16}, {TS}, s{T+9} offen lds")
        if r < 3:
            A(f"s_add_u32 s{T+9}, s{T+9}, s{T+1}")
            A(f"s_add_u32 s{T+10}, s{T+10}, {RS}")
    A("s_mov_b64 exec, -1")
    V = 16
    A(f"v_lshrrev_b32 v{V}, 5, v{V_LANE}")
    A(f"v_lshlrev_b32 v{V}, 3, v{V}")
    A(f"v_bfe_u32 v{V+1}, v{V_LANE}, 2, 2")
    A(f"v_add_u32 v{V}, v{V}, v{V+1}")
    A(f"v_mul_u32_u24 v{V}, {RS}, v{V}")
    A(f"v_bfe_u32 v{V+1}, v{V_LANE}, 4, 1")
    A(f"v_lshl_add_u32 v{V}, v{V+1}, 5, v{V}")
    A(f"v_and_b32 v{V+1}, 3, v{V_LANE}")
    A(f"v_lshl_add_u32 v{V}, v{V+1}, 3, v{V}")
    A(f"s_mul_i32 s{T+9}, s{T+8}, s{T+3}")
    A(f"v_add_u32 v{V}, s{T+9}, v{V}")
    A(f"s_mul_i32 s{T+10}, s{T+8}, s{T+5}")
    A(f"s_add_u32 s{T+10}, s{T+10}, s{T+4}")
    A(f"s_cmp_eq_u32 s{T+7}, 1")
    A(f"s_cselect_b32 s{T+2}, s{S_PADM}, 0")
    A(f"s_mov_b32 vcc_lo, s{T+2}")
    A(f"s_mov_b32 vcc_hi, s{T+2}")
    A("s_waitcnt vmcnt(0)")
    A("s_barrier")
    for j in range(4):
        D = 20 + 4 * j
        A(f"ds_read_b64_tr_b16 v[{D}:{D+1}], v{V}")
        A(f"ds_read_b64_tr_b16 v[{D+2}:{D+3}], v{V} offset:{4*RS}")
        if j < 3: A(f"v_add_u32 v{V}, s{T+3}, v{V}")
    A("s_waitcnt lgkmcnt(0)")
    for j in range(4):
        D = 20 + 4 * j
        for r in range(4):
            A(f"v_cndmask_b32 v{D+r}, v{D+r}, 0, vcc")
        lab = A.newlabel('pf')
        A(f"s_add_u32 s{T+9}, s{T+8}, {j}")
        A(f"s_cmp_ge_u32 s{T+9}, s{T+6}")
        A(f"s_cbranch_scc1 {lab}")
        A(f"buffer_store_dwordx4 v[{D}:{D+3}], v{V_L16}, {WS}, s{T+10} offen sc1")
        A.label(lab)
        A(f"s_add_u32 s{T+10}, s{T+10}, s{T+5}")
    A("s_branch L_prep_x")
    A.label(lab_skip)
    A("s_waitcnt lgkmcnt(0)")
    A("s_barrier")
    A.label("L_prep_x")
    set_srd(SRD_T, 0, 2048 * 896)
    V = 40
    A(f"v_and_b32 v{V}, 7, v{V_LANE}")
    A(f"v_lshrrev_b32 v{V+1}, 3, v{V_LANE}")
    A(f"v_mul_u32_u24 v{V+2}, 896, v{V}")
    A(f"v_lshl_add_u32 v{V+2}, v{V+1}, 4, v{V+2}")
    A(f"v_lshlrev_b32 v{V+3}, 9, v{V+1}")
    A(f"v_lshl_add_u32 v{V+3}, v{V}, 4, v{V+3}")
    A(f"s_lshl_b32 s{T}, s{S_RB}, 4")
    A(f"s_add_u32 s{T}, s{T}, s{S_H}")
    A(f"s_mul_i32 s{T}, s{T}, {8*896}")
    A(f"s_lshl_b32 s{T+1}, s{S_W}, 7")
    A(f"s_add_u32 s{T}, s{T}, s{T+1}")
    A(f"s_and_b32 s{T+2}, s{S_H}, 3")
    A(f"s_lshl_b32 s{T+3}, s{T+2}, 7")
    A(f"s_add_u32 s{T+3}, s{T+3}, s{S_RTO28}")
    A(f"s_lshl_b32 s{T+1}, s{S_W}, 12")
    A(f"s_add_u32 s{T+3}, s{T+3}, s{T+1}")
    A(f"s_add_u32 s{T+3}, s{T+3}, {XF[0]}")
    A(f"v_lshrrev_b32 v{V+4}, 5, v{V_LANE}")
    A(f"v_lshlrev_b32 v{V+4}, 8, v{V+4}")
    A(f"v_lshl_add_u32 v{V+4}, v{V}, 3, v{V+4}")
    A(f"s_lshl_b32 s{T+4}, s{T+2}, 6")
    A(f"s_add_u32 s{T+4}, s{T+4}, s{S_RTOST}")
    A(f"s_lshl_b32 s{T+1}, s{S_W}, 9")
    A(f"s_add_u32 s{T+4}, s{T+4}, s{T+1}")
    A(f"s_add_u32 s{T+4}, s{T+4}, {XF[0] + XST}")
    A(f"v_mov_b32 v{V+5}, 0x3f803f80")
    A("s_waitcnt lgkmcnt(0)")
    for n in range(2):
        D = 48 + 4 * n
        lab = A.newlabel('px')
        if n == 1:
            A(f"s_cmp_eq_u32 s{S_W}, 3")
            A(f"s_cbranch_scc1 {lab}")
        A(f"buffer_load_dwordx4 v[{D}:{D+3}], v{V+2}, {TS}, s{T} offen offset:{512*n}")
        A("s_waitcnt vmcnt(0)")
        if n == 1:
            A(f"s_add_u32 s{T+3}, s{T+3}, 16384")
            A(f"s_add_u32 s{T+4}, s{T+4}, 2048")
        A(f"buffer_store_dwordx4 v[{D}:{D+3}], v{V+3}, {WS}, s{T+3} offen sc1")
        Sm, Sq = 56, 57
        A(f"v_mov_b32 v{Sm}, 0")
        A(f"v_mov_b32 v{Sq}, 0")
        for r in range(4):
            A(f"v_dot2c_f32_bf16 v{Sm}, v{D+r}, v{V+5}")
            A(f"v_dot2c_f32_bf16 v{Sq}, v{D+r}, v{D+r}")
        for x in (Sm, Sq):
            A(f"v_add_f32_dpp v{x}, v{x}, v{x} row_ror:8 row_mask:0xf bank_mask:0xf")
        for x in (Sm, Sq):
            A(f"v_mov_b32 v{x+2}, v{x}")
        for x in (Sm, Sq):
            A(f"v_permlane16_swap_b32 v{x}, v{x+2}")
        for x in (Sm, Sq):
            A(f"v_add_f32 v{x}, v{x}, v{x+2}")
        A("s_mov_b32 exec_lo, 0xff")
        A("s_mov_b32 exec_hi, 0xff")
        A(f"buffer_store_dwordx2 v[{Sm}:{Sq}], v{V+4}, {WS}, s{T+4} offen sc1")
        A("s_mov_b64 exec, -1")
        A.label(lab)

def poison_regs(base):
    for r in range(4): A(f"v_mov_b32 v{base+r}, -1")

def kvp_store_addr(v, s):
    A(f"v_lshrrev_b32 v{v}, 4, v{V_LANE}")
    A(f"v_lshlrev_b32 v{v}, 13, v{v}")
    A(f"v_bfe_u32 v{v+1}, v{V_LANE}, 2, 2")
    A(f"v_lshl_add_u32 v{v}, v{v+1}, 7, v{v}")
    A(f"v_and_b32 v{v+1}, 3, v{V_LANE}")
    A(f"v_lshl_add_u32 v{v}, v{v+1}, 4, v{v}")
    A(f"s_lshl_b32 s{s}, s{S_H}, 17")
    A(f"s_lshl_b32 s{s+1}, s{S_W}, 15")
    A(f"s_add_u32 s{s}, s{s}, s{s+1}")
    A(f"s_lshl_b32 s{s+1}, s{S_RB}, 9")
    A(f"s_add_u32 s{s}, s{s}, s{s+1}")

def poison_first():
    T = S_T
    P = 16
    poison_regs(P)
    kvp_store_addr(20, T)
    for slot in range(2):
        A(f"s_add_u32 s{T+2}, s{T}, {KVP[slot]}")
        for hfi in range(2):
            A(f"buffer_store_dwordx4 v[{P}:{P+3}], v20, {WS}, s{T+2} offen offset:{64*hfi} sc1")
    A(f"s_lshl_b32 s{T}, s{S_H}, 12")
    A(f"s_lshl_b32 s{T+1}, s{S_RB}, 8")
    A(f"s_add_u32 s{T}, s{T}, s{T+1}")
    A(f"s_lshl_b32 s{T+1}, s{S_W}, 6")
    A(f"s_add_u32 s{T}, s{T}, s{T+1}")
    A("s_mov_b64 exec, 0xf")
    for slot in range(2):
        A(f"s_add_u32 s{T+2}, s{T}, {KVR[slot]}")
        A(f"buffer_store_dwordx4 v[{P}:{P+3}], v{V_L16}, {WS}, s{T+2} offen sc1")
    A("s_mov_b64 exec, -1")

def arrive(lo, hi):
    lab = A.newlabel('arr')
    A("s_waitcnt vmcnt(0) lgkmcnt(0)")
    A("s_barrier")
    A(f"s_cmp_lg_u32 s{S_W}, 0")
    A(f"s_cbranch_scc1 {lab}")
    A(f"s_and_b32 s{S_T+10}, s{S_ID}, 7")
    A(f"s_lshl_b32 s{S_T+10}, s{S_T+10}, 5")
    A(f"v_mov_b32 v16, s{lo}")
    A(f"v_mov_b32 v17, s{hi}")
    A("s_mov_b64 exec, 1")
    A(f"buffer_atomic_add_x2 v[16:17], off, {DB}, s{S_T+10} sc1")
    A("s_mov_b64 exec, -1")
    A.label(lab)

def barrier0():
    T = S_T
    A(f"s_getreg_b32 s{T}, hwreg(HW_REG_XCC_ID)")
    A(f"s_and_b32 s{T}, s{T}, 7")
    A(f"s_mul_i32 s{T}, s{T}, 6")
    A(f"s_add_u32 s{T}, s{T}, 8")
    A(f"s_mov_b64 s[{T+2}:{T+3}], 1")
    A(f"s_lshl_b64 s[{T+2}:{T+3}], s[{T+2}:{T+3}], s{T}")
    A(f"s_add_u32 s{T+2}, s{T+2}, 1")
    arrive(T + 2, T + 3)
    stamp('b0_arrive')
    A(f"v_and_b32 v18, 7, v{V_LANE}")
    A("v_lshlrev_b32 v18, 5, v18")
    A.label("L_b0_poll")
    A("s_sleep 8")
    A(f"buffer_load_dwordx2 v[16:17], v18, {DB}, 0 offen sc1")
    spin_check()
    A("s_waitcnt vmcnt(0)")
    A("v_and_b32 v19, 0xff, v16")
    A("v_cmp_ne_u32 vcc, 32, v19")
    A("s_cbranch_vccnz L_b0_poll")
    A(f"s_and_b32 s{T+4}, s{S_ID}, 7")
    A(f"v_readlane_b32 s{T+2}, v16, s{T+4}")
    A(f"v_readlane_b32 s{T+3}, v17, s{T+4}")
    A("s_nop 3")
    A(f"s_lshr_b64 s[{T+2}:{T+3}], s[{T+2}:{T+3}], s{T}")
    A(f"s_and_b32 s{T+2}, s{T+2}, 63")
    A(f"s_cmp_eq_u32 s{T+2}, 32")
    A(f"s_cselect_b32 s{S_FAST}, 1, 0")
    if OPT['force_slow']:
        A(f"s_mov_b32 s{S_FAST}, 0")
    stamp('b0_done')

def barrier1_check():
    A(f"v_and_b32 v18, 7, v{V_LANE}")
    A("v_lshlrev_b32 v18, 5, v18")
    lab = A.newlabel('b1p')
    A.label(lab)
    A(f"buffer_load_dword v17, v18, {DB}, 0 offen offset:4 sc1")
    spin_check()
    A("s_waitcnt vmcnt(0)")
    A("v_lshrrev_b32 v17, 24, v17")
    A("v_cmp_ne_u32 vcc, 32, v17")
    A(f"s_cbranch_vccnz {lab}")

def x_pub_addr(s_dst, s_st, slot_sgpr_or_const):
    A(f"s_lshl_b32 s{s_dst}, s{S_CT}, 11")
    A(f"s_add_u32 s{s_dst}, s{s_dst}, s{S_RTO28}")
    A(f"s_add_u32 s{s_dst}, s{s_dst}, {slot_sgpr_or_const}")
    A(f"s_lshl_b32 s{s_st}, s{S_CT}, 8")
    A(f"s_add_u32 s{s_st}, s{s_st}, s{S_RTOST}")
    A(f"s_add_u32 s{s_st}, s{s_st}, {slot_sgpr_or_const}")
    A(f"s_add_u32 s{s_st}, s{s_st}, {XST}")

def kvf_addr(s):
    A(f"s_lshl_b32 s{s}, s{S_RTST}, 3")
    A(f"s_lshl_b32 s{s+1}, s{S_H}, 11")
    A(f"s_add_u32 s{s}, s{s}, s{s+1}")

def poison_rest():
    T = S_T
    P = 16
    poison_regs(P)
    def emit(fl):
        for i in range(4):
            A(f"s_add_u32 s{T}, s{S_RT28}, {OF[i]}")
            for q in range(3):
                A(f"buffer_store_dwordx2 v[{P}:{P+1}], v{V_OO}, {WS}, s{T} offen offset:{512*q} {fl}")
            A("s_mov_b32 exec_hi, 0")
            A(f"buffer_store_dwordx2 v[{P}:{P+1}], v{V_OO}, {WS}, s{T} offen offset:1536 {fl}")
            A("s_mov_b64 exec, -1")
        lab = A.newlabel('pr')
        A(f"s_cmp_ge_u32 s{S_CT}, 14")
        A(f"s_cbranch_scc1 {lab}")
        for i in range(1, 4):
            x_pub_addr(T, T + 1, XF[i])
            A(f"buffer_store_dwordx4 v[{P}:{P+3}], v{V_L16}, {WS}, s{T} offen {fl}")
            A(f"buffer_store_dwordx4 v[{P}:{P+3}], v{V_L16}, {WS}, s{T} offen offset:1024 {fl}")
            A("s_mov_b32 exec_hi, 0")
            A(f"buffer_store_dwordx2 v[{P}:{P+1}], v{V_L8}, {WS}, s{T+1} offen {fl}")
            A("s_mov_b64 exec, -1")
        A.label(lab)
    local_stores(emit)
    kvf_addr(T)
    for base in (KF[0], VF[0], KF[1], VF[1]):
        A(f"s_add_u32 s{T+2}, s{T}, {base}")
        A(f"buffer_store_dwordx4 v[{P}:{P+3}], v{V_L16}, {WS}, s{T+2} offen sc1")
        A(f"buffer_store_dwordx4 v[{P}:{P+3}], v{V_L16}, {WS}, s{T+2} offen offset:1024 sc1")
    A(f"s_mov_b32 s{T+2}, 0")
    A(f"s_mov_b32 s{T+3}, 0x01000000")
    arrive(T + 2, T + 3)

def load_w_image(base_const_or_sgpr, secs):
    T = S_T
    for sec in secs:
        A(f"s_add_u32 s{T}, s{S_WFH}, s{S_G}")
        A(f"s_add_u32 s{T}, s{T}, {base_const_or_sgpr}")
        if sec: A(f"s_add_u32 s{T}, s{T}, {sec*28672}")
        A(f"s_add_u32 s{T+1}, s{S_G}, {L_W + sec*28672}")
        A(f"s_mov_b32 m0, s{T+1}")
        for i in range(4):
            A(f"buffer_load_dwordx4 v{V_L16}, {WS}, s{T} offen offset:{1024*i} sc1 lds")
        A(f"s_add_u32 s{T}, s{T}, 4096")
        A(f"s_add_u32 s{T+1}, s{T+1}, 4096")
        A(f"s_mov_b32 m0, s{T+1}")
        for i in range(3):
            A(f"buffer_load_dwordx4 v{V_L16}, {WS}, s{T} offen offset:{1024*i} sc1 lds")

def load_wo(base, areg):
    T = S_T
    lab = A.newlabel('lw')
    A(f"s_cmp_ge_u32 s{S_CT}, 14")
    A(f"s_cbranch_scc1 {lab}")
    A(f"s_mul_i32 s{T}, s{S_CT}, {TILE}")
    A(f"s_add_u32 s{T}, s{T}, {base}")
    for g in range(4):
        A(f"s_add_u32 s{T+1}, s{T}, s{S_G+g}")
        A(f"s_add_u32 s{T+2}, s{T+1}, 4096")
        for i in range(7):
            r = areg + 4 * (7 * g + i)
            so, im = (T + 1, 1024 * i) if i < 4 else (T + 2, 1024 * (i - 4))
            A(f"buffer_load_dwordx4 a[{r}:{r+3}], v{V_L16}, {WS}, s{so} offen offset:{im} sc1")
    A.label(lab)

def load_consts():
    T = S_T
    set_srd(SRD_T, 16, 16 * 1568)
    V = 16
    A(f"v_and_b32 v{V}, 31, v{V_LANE}")
    A(f"v_lshrrev_b32 v{V+1}, 5, v{V_LANE}")
    A(f"v_mul_u32_u24 v{V+1}, {4*56}, v{V+1}")
    A(f"v_lshl_add_u32 v{V+1}, v{V}, 1, v{V+1}")
    A(f"v_mov_b32 v{V+3}, 0x100000")
    A(f"v_cndmask_b32 v{V+1}, v{V+1}, v{V+3}, s[{S_PADM}:{S_PADM+1}]")
    A(f"v_cndmask_b32 v{V+2}, v{V+1}, v{V+3}, {HF}")
    A(f"s_mul_i32 s{T}, s{S_H}, 1568")
    D = 20
    H2 = 48
    A("s_waitcnt lgkmcnt(0)")
    for j in range(2):
        for jj in range(8):
            d0 = 16 * j + (jj & 3) + 8 * (jj >> 2)
            va = V + 2 if d0 >= 24 else V + 1
            r = (H2 if jj & 1 else D) + 4 * j + jj // 2
            A(f"buffer_load_ushort v{r}, v{va}, {TS}, s{T} offen offset:{d0*56}")
    A(f"v_lshrrev_b32 v30, 5, v{V_LANE}")
    A(f"v_lshlrev_b32 v30, 2, v30")
    A(f"v_sub_u32 v30, v{V}, v30")
    I = 32
    A(f"v_mov_b32 v{I+8}, 0x3f80")
    A(f"v_mov_b32 v{I+9}, 0x3f800000")
    for j in range(2):
        for p in range(4):
            d0 = 16 * j + ((2 * p) & 3) + 8 * ((2 * p) >> 2)
            r = I + 4 * j + p
            A(f"v_cmp_eq_u32 vcc, {d0}, v30")
            A(f"v_cndmask_b32 v{r}, 0, v{I+8}, vcc")
            A(f"v_cmp_eq_u32 vcc, {d0+1}, v30")
            A(f"v_cndmask_b32 v{r}, v{r}, v{I+9}, vcc")
    for r in range(8): A(f"v_accvgpr_write_b32 a{A_ID+r}, v{I+r}")
    A("s_waitcnt vmcnt(0)")
    for r in range(8): A(f"v_lshl_or_b32 v{D+r}, v{H2+r}, 16, v{D+r}")
    for r in range(8): A(f"v_accvgpr_write_b32 a{A_PHI+r}, v{D+r}")

def load_resid0():
    T = S_T
    lab = A.newlabel('lr')
    A(f"s_cmp_ge_u32 s{S_CT}, 14")
    A(f"s_cbranch_scc1 {lab}")
    x_pub_addr(T, T + 1, XF[0])
    A(f"buffer_load_dwordx4 a[{A_XR}:{A_XR+3}], v{V_L16}, {WS}, s{T} offen sc1")
    A(f"buffer_load_dwordx4 a[{A_XR+4}:{A_XR+7}], v{V_L16}, {WS}, s{T} offen offset:1024 sc1")
    A.label(lab)

VX = 128
V_AK, V_AV, V_AQ = 16, 32, 48
V_CK, V_CV = 64, 80
V_WB = 96
V_ONES = 112
V_ST = 240
V_RSTD, V_NMR = 116, 117
V_CHK = 118
V_CS = 120

def x_loads():
    T = S_T
    A(f"s_add_u32 s{T}, s{S_X}, s{S_RT28}")
    for g in range(4):
        A(f"s_add_u32 s{T+1}, s{T}, s{S_G+g}")
        A(f"s_add_u32 s{T+2}, s{T+1}, 4096")
        for i in range(7):
            r = VX + 4 * (7 * g + i)
            so, im = (T + 1, 1024 * i) if i < 4 else (T + 2, 1024 * (i - 4))
            A(f"buffer_load_dwordx4 v[{r}:{r+3}], v{V_L16}, {WS}, s{so} offen offset:{im} sc1")

def qkv_kv_pass(tag):
    T = S_T
    redo = f"L_{tag}_redo"
    for r in range(4): A(f"v_mov_b32 v{V_ONES+r}, 0x3f803f80")
    A.label(redo)
    A(f"s_add_u32 s{T+4}, s{S_X}, s{S_RTST}")
    A(f"s_add_u32 s{T+4}, s{T+4}, {XST}")
    poll = f"L_{tag}_poll"
    A.label(poll)
    for i in range(7):
        A(f"buffer_load_dwordx2 v[{V_ST+2*i}:{V_ST+2*i+1}], v{V_L8}, {WS}, s{T+4} offen offset:{512*i} sc1")
    spin_check()
    A("s_waitcnt vmcnt(0)")
    A(f"v_max3_u32 v{V_CHK}, v{V_ST}, v{V_ST+1}, v{V_ST+2}")
    for i in range(3, 13, 2):
        A(f"v_max3_u32 v{V_CHK}, v{V_CHK}, v{V_ST+i}, v{V_ST+i+1}")
    A(f"v_max_u32 v{V_CHK}, v{V_CHK}, v{V_ST+13}")
    A(f"v_cmp_eq_u32 vcc, -1, v{V_CHK}")
    A(f"s_cbranch_vccnz {poll}")
    x_loads()
    stamp(f'L:{tag}_probe')
    for i in range(1, 7):
        A(f"v_add_f32 v{V_ST}, v{V_ST}, v{V_ST+2*i}")
        A(f"v_add_f32 v{V_ST+1}, v{V_ST+1}, v{V_ST+2*i+1}")
    A(f"v_mov_b32 v{V_ST+2}, v{V_ST}")
    A(f"v_mov_b32 v{V_ST+3}, v{V_ST+1}")
    A(f"v_permlane32_swap_b32 v{V_ST}, v{V_ST+2}")
    A(f"v_permlane32_swap_b32 v{V_ST+1}, v{V_ST+3}")
    A(f"v_add_f32 v{V_ST}, v{V_ST}, v{V_ST+2}")
    A(f"v_add_f32 v{V_ST+1}, v{V_ST+1}, v{V_ST+3}")
    A(f"v_mul_f32 v{V_ST}, {f32(1/448):#x}, v{V_ST}")
    A(f"v_mul_f32 v{V_ST+1}, {f32(1/448):#x}, v{V_ST+1}")
    A(f"v_fma_f32 v{V_ST+1}, -v{V_ST}, v{V_ST}, v{V_ST+1}")
    A(f"v_max_f32 v{V_ST+1}, 0, v{V_ST+1}")
    A(f"v_add_f32 v{V_ST+1}, {f32(1e-5):#x}, v{V_ST+1}")
    A(f"v_rsq_f32 v{V_RSTD}, v{V_ST+1}")
    A(f"v_mul_f32 v{V_NMR}, v{V_ST}, v{V_RSTD}")
    A(f"v_sub_f32 v{V_NMR}, 0, v{V_NMR}")
    A(f"s_lshl_b32 s{T+5}, s{S_W}, 8")
    A(f"s_add_u32 s{T+5}, s{T+5}, {L_SM + 2048}")
    A(f"v_cndmask_b32 v{V_ST+2}, v{V_RSTD}, v{V_NMR}, {HF}")
    A(f"v_lshl_add_u32 v{V_ST+3}, v{V_LANE}, 2, s{T+5}")
    A(f"ds_write_b32 v{V_ST+3}, v{V_ST+2}")
    A(f"v_mov_b32 v{V_CHK}, 0")
    def wread(step, buf):
        g, i = divmod(step, 7)
        A(f"ds_read_b128 v[{buf}:{buf+3}], v{V_WG+g} offset:{L_W + 1024*i}")
        A(f"ds_read_b128 v[{buf+4}:{buf+7}], v{V_WG+g} offset:{L_W + 28672 + 1024*i}")
    wread(0, V_WB)
    for st in range(28):
        buf = V_WB + 8 * (st & 1)
        nb = V_WB + 8 * ((st + 1) & 1)
        x = f"v[{VX+4*st}:{VX+4*st+3}]"
        if st == 6:
            A("s_barrier")
        if st + 1 < 28:
            wread(st + 1, nb)
            A(f"s_waitcnt vmcnt({27-st}) lgkmcnt(2)")
        else:
            A(f"s_waitcnt vmcnt(0) lgkmcnt(0)")
        ck = "0" if st == 0 else f"v[{V_AK}:{V_AK+15}]"
        cv = "0" if st == 0 else f"v[{V_AV}:{V_AV+15}]"
        mfma(f"v[{V_AK}:{V_AK+15}]", f"v[{buf}:{buf+3}]", x, ck)
        A(f"v_max3_u32 v{V_CHK}, v{V_CHK}, v{VX+4*st}, v{VX+4*st+1}")
        mfma(f"v[{V_AV}:{V_AV+15}]", x, f"v[{buf+4}:{buf+7}]", cv)
        A(f"v_max3_u32 v{V_CHK}, v{V_CHK}, v{VX+4*st+2}, v{VX+4*st+3}")
        if st < 7:
            ones = f"v[{V_ONES}:{V_ONES+3}]"
            mfma(f"v[{V_CK}:{V_CK+15}]", ones, f"v[{buf}:{buf+3}]", "0" if st == 0 else f"v[{V_CK}:{V_CK+15}]")
            mfma(f"v[{V_CV}:{V_CV+15}]", ones, f"v[{buf+4}:{buf+7}]", "0" if st == 0 else f"v[{V_CV}:{V_CV+15}]")
        if st == 8:
            A(f"v_cndmask_b32 v{V_ST+4}, v{V_CK}, v{V_CV}, {HF}")
            A(f"s_lshl_b32 s{T+6}, s{S_W}, 2")
            A(f"s_add_u32 s{T+6}, s{T+6}, {L_SM}")
            A(f"v_add_u32 v{V_ST+5}, s{T+6}, v{V_L16}")
            A(f"ds_write_b32 v{V_ST+5}, v{V_ST+4}")
            A("s_waitcnt lgkmcnt(0)")
    A(f"v_cmp_eq_u32 vcc, -1, v{V_CHK}")
    A(f"s_cbranch_vccz L_{tag}_ok")
    A.label(f"L_{tag}_slow")
    x_loads()
    spin_check()
    A(f"v_mov_b32 v{V_CHK}, 0")
    A("s_waitcnt vmcnt(0)")
    for st in range(28):
        A(f"v_max3_u32 v{V_CHK}, v{V_CHK}, v{VX+4*st}, v{VX+4*st+1}")
        A(f"v_max3_u32 v{V_CHK}, v{V_CHK}, v{VX+4*st+2}, v{VX+4*st+3}")
    A(f"v_cmp_eq_u32 vcc, -1, v{V_CHK}")
    A(f"s_cbranch_vccnz L_{tag}_slow")
    for st in range(28):
        buf = V_WB
        x = f"v[{VX+4*st}:{VX+4*st+3}]"
        wread(st, buf)
        A("s_waitcnt lgkmcnt(0)")
        ck = "0" if st == 0 else f"v[{V_AK}:{V_AK+15}]"
        cv = "0" if st == 0 else f"v[{V_AV}:{V_AV+15}]"
        mfma(f"v[{V_AK}:{V_AK+15}]", f"v[{buf}:{buf+3}]", x, ck)
        mfma(f"v[{V_AV}:{V_AV+15}]", x, f"v[{buf+4}:{buf+7}]", cv)
        A("s_nop 7")
    A("s_nop 15")
    A.label(f"L_{tag}_ok")
    A("s_barrier")
    stamp(f'L:{tag}_kvgemm')

def colsum_finish(tiles_desc):
    pass

def norm_kv(tag):
    T = S_T
    C = 96
    A(f"v_add_u32 v{V_ST+5}, {L_SM}, v{V_L16}")
    A(f"ds_read_b128 v[{C}:{C+3}], v{V_ST+5}")
    A(f"v_lshrrev_b32 v{V_ST+6}, 5, v{V_LANE}")
    A(f"v_lshl_add_u32 v{V_ST+6}, v{V_ST+6}, 4, s{T+5}")
    RS_, NM_ = 64, 80
    for q in range(4):
        A(f"ds_read_b128 v[{RS_+4*q}:{RS_+4*q+3}], v{V_ST+6} offset:{32*q}")
        A(f"ds_read_b128 v[{NM_+4*q}:{NM_+4*q+3}], v{V_ST+6} offset:{128+32*q}")
    A("s_waitcnt lgkmcnt(8)")
    A(f"v_add_f32 v{C}, v{C}, v{C+1}")
    A(f"v_add_f32 v{C+2}, v{C+2}, v{C+3}")
    A(f"v_add_f32 v{C}, v{C}, v{C+2}")
    A(f"v_add_u32 v{V_ST+7}, 1024, v{V_ST+3}")
    A(f"ds_write_b32 v{V_ST+7}, v{C}")
    A(f"v_mov_b32 v{C+1}, v{C}")
    A(f"v_permlane32_swap_b32 v{C}, v{C+1}")
    A("s_waitcnt lgkmcnt(0)")
    CK = 100
    for q in range(3):
        A(f"ds_read_b128 v[{CK+4*q}:{CK+4*q+3}], v{V_ST+6} offset:{1024+32*q}")
    A(f"ds_read_b128 v[{V_ST+8}:{V_ST+11}], v{V_ST+6} offset:{1024+96}")
    for r in range(16):
        A(f"v_mul_f32 v{NM_+r}, v{NM_+r}, v{C+1}")
        A(f"v_fma_f32 v{V_AV+r}, v{V_AV+r}, v{RS_+r}, v{NM_+r}")
    A("s_waitcnt lgkmcnt(0)")
    for r in range(16):
        cs = CK + r if r < 12 else V_ST + 8 + (r - 12)
        A(f"v_mul_f32 v{cs}, v{cs}, v{V_NMR}")
        A(f"v_fma_f32 v{V_AK+r}, v{V_AK+r}, v{V_RSTD}, v{cs}")
    for p in range(8):
        A(f"v_cvt_pk_bf16_f32 v{64+p}, v{V_AK+2*p}, v{V_AK+2*p+1}")
    for p in range(8):
        A(f"v_cvt_pk_bf16_f32 v{72+p}, v{V_AV+2*p}, v{V_AV+2*p+1}")
    for p in range(8):
        A(f"v_cndmask_b32 v{72+p}, v{72+p}, v{V_ONES}, s[{S_L28}:{S_L28+1}]")

def q_pass(tag, mid=None, scale=None):
    T = S_T
    WB = 96
    CQ = 32
    def wread(step, buf):
        g, i = divmod(step, 7)
        A(f"ds_read_b128 v[{buf}:{buf+3}], v{V_WG+g} offset:{L_W + 57344 + 1024*i}")
    wread(0, WB); wread(1, WB + 4); wread(2, WB + 8)
    for st in range(28):
        buf = WB + 4 * (st & 3)
        if st + 3 < 28:
            wread(st + 3, WB + 4 * ((st + 3) & 3))
            A("s_waitcnt lgkmcnt(3)")
        else:
            A(f"s_waitcnt lgkmcnt({27-st})")
        x = f"v[{VX+4*st}:{VX+4*st+3}]"
        mfma(f"v[{V_AQ}:{V_AQ+15}]", f"v[{buf}:{buf+3}]", x, "0" if st == 0 else f"v[{V_AQ}:{V_AQ+15}]")
        if st < 7:
            mfma(f"v[{CQ}:{CQ+15}]", f"v[{V_ONES}:{V_ONES+3}]", f"v[{buf}:{buf+3}]", "0" if st == 0 else f"v[{CQ}:{CQ+15}]")
        if st == 9:
            A(f"s_lshl_b32 s{T+6}, s{S_W}, 2")
            A(f"s_add_u32 s{T+6}, s{T+6}, {L_SM + 1024}")
            A(f"v_add_u32 v{V_ST+5}, s{T+6}, v{V_L16}")
            A("s_mov_b32 exec_hi, 0")
            A(f"ds_write_b32 v{V_ST+5}, v{CQ}")
            A("s_mov_b64 exec, -1")
            A("s_waitcnt lgkmcnt(0)")
        if mid: mid(st)
    A("s_barrier")
    C = 96
    A(f"v_and_b32 v{V_ST+5}, 0x1ff, v{V_L16}")
    A(f"v_add_u32 v{V_ST+5}, {L_SM + 1024}, v{V_ST+5}")
    A(f"ds_read_b128 v[{C}:{C+3}], v{V_ST+5}")
    A("s_waitcnt lgkmcnt(0)")
    A(f"v_add_f32 v{C}, v{C}, v{C+1}")
    A(f"v_add_f32 v{C+2}, v{C+2}, v{C+3}")
    A(f"v_add_f32 v{C}, v{C}, v{C+2}")
    A(f"ds_write_b32 v{V_ST+7}, v{C}")
    A("s_waitcnt lgkmcnt(0)")
    for q in range(4):
        A(f"ds_read_b128 v[{C+4*q}:{C+4*q+3}], v{V_ST+6} offset:{1024+32*q}")
    A("s_waitcnt lgkmcnt(0)")
    for r in range(16):
        A(f"v_mul_f32 v{C+r}, v{C+r}, v{V_NMR}")
        A(f"v_fma_f32 v{V_AQ+r}, v{V_AQ+r}, v{V_RSTD}, v{C+r}")
    for p in range(8):
        A(f"v_cvt_pk_bf16_f32 v{80+p}, v{V_AQ+2*p}, v{V_AQ+2*p+1}")

def phi(src, dst, P, E, t):
    for j in range(2):
        mfma(f"v[{P}:{P+15}]", f"a[{A_PHI+4*j}:{A_PHI+4*j+3}]", f"v[{src+4*j}:{src+4*j+3}]", "0" if j == 0 else f"v[{P}:{P+15}]")
    for r in range(12, 16):
        A(f"v_cndmask_b32 v{P+r}, v{P+r}, v{P}, {HF}")
    mx, mn = t, t + 1
    A(f"v_max3_f32 v{mx}, v{P}, v{P+1}, v{P+2}")
    A(f"v_min3_f32 v{mn}, v{P}, v{P+1}, v{P+2}")
    for r in range(3, 15, 2):
        A(f"v_max3_f32 v{mx}, v{mx}, v{P+r}, v{P+r+1}")
        A(f"v_min3_f32 v{mn}, v{mn}, v{P+r}, v{P+r+1}")
    A(f"v_max_f32 v{mx}, v{mx}, v{P+15}")
    A(f"v_min_f32 v{mn}, v{mn}, v{P+15}")
    A(f"v_mov_b32 v{t+2}, v{mx}")
    A(f"v_mov_b32 v{t+3}, v{mn}")
    A(f"v_permlane32_swap_b32 v{mx}, v{t+2}")
    A(f"v_permlane32_swap_b32 v{mn}, v{t+3}")
    A(f"v_max_f32 v{mx}, v{mx}, v{t+2}")
    A(f"v_min_f32 v{mn}, v{mn}, v{t+3}")
    A(f"v_mul_f32 v{mx}, s{S_C1}, v{mx}")
    A(f"v_mul_f32 v{mn}, s{S_C1}, v{mn}")
    for r in range(16):
        A(f"v_fma_f32 v{E+r}, -v{P+r}, s{S_C1}, v{mn}")
        A(f"v_fma_f32 v{P+r}, v{P+r}, s{S_C1}, -v{mx}")
    for r in range(16):
        A(f"v_exp_f32 v{P+r}, v{P+r}")
        A(f"v_exp_f32 v{E+r}, v{E+r}")
    for r in range(12, 16):
        A(f"v_cndmask_b32 v{P+r}, v{P+r}, 0, {HF}")
        A(f"v_cndmask_b32 v{E+r}, v{E+r}, 0, {HF}")
    sp, sn = t + 4, t + 6
    A(f"v_pk_add_f32 v[{sp}:{sp+1}], v[{P}:{P+1}], v[{P+2}:{P+3}]")
    A(f"v_pk_add_f32 v[{sn}:{sn+1}], v[{E}:{E+1}], v[{E+2}:{E+3}]")
    for r in range(4, 16, 2):
        A(f"v_pk_add_f32 v[{sp}:{sp+1}], v[{sp}:{sp+1}], v[{P+r}:{P+r+1}]")
        A(f"v_pk_add_f32 v[{sn}:{sn+1}], v[{sn}:{sn+1}], v[{E+r}:{E+r+1}]")
    A(f"v_add_f32 v{sp}, v{sp}, v{sp+1}")
    A(f"v_add_f32 v{sn}, v{sn}, v{sn+1}")
    A(f"v_mov_b32 v{sp+1}, v{sp}")
    A(f"v_mov_b32 v{sn+1}, v{sn}")
    A(f"v_permlane32_swap_b32 v{sp}, v{sp+1}")
    A(f"v_permlane32_swap_b32 v{sn}, v{sn+1}")
    A(f"v_add_f32 v{sp}, v{sp}, v{sp+1}")
    A(f"v_add_f32 v{sn}, v{sn}, v{sn+1}")
    A(f"v_rcp_f32 v{sp}, v{sp}")
    A(f"v_rcp_f32 v{sn}, v{sn}")
    for r in range(0, 16, 2):
        A(f"v_pk_mul_f32 v[{P+r}:{P+r+1}], v[{P+r}:{P+r+1}], v[{sp}:{sp+1}] op_sel_hi:[1,0]")
        A(f"v_pk_mul_f32 v[{E+r}:{E+r+1}], v[{E+r}:{E+r+1}], v[{sn}:{sn+1}] op_sel_hi:[1,0]")
    for p in range(8):
        A(f"v_cvt_pk_bf16_f32 v{dst+p}, v{P+2*p}, v{P+2*p+1}")
    for p in range(8):
        A(f"v_cvt_pk_bf16_f32 v{dst+8+p}, v{E+2*p}, v{E+2*p+1}")

def o_publish(O):
    T = S_T
    t = V_TMP
    A(f"v_mov_b32 v{t}, v{O+12}")
    A(f"v_mov_b32 v{t+1}, v{O+12}")
    A(f"v_permlane32_swap_b32 v{t}, v{t+1}")
    A(f"v_add_f32 v{t+1}, s{S_EPS}, v{t+1}")
    A(f"v_rcp_f32 v{t}, v{t+1}")
    A(f"s_add_u32 s{T}, s{S_O}, s{S_RT28}")
    for r in range(0, 16, 2):
        A(f"v_pk_mul_f32 v[{O+r}:{O+r+1}], v[{O+r}:{O+r+1}], v[{t}:{t+1}] op_sel_hi:[1,0]")
    for p in range(8):
        A(f"v_cvt_pk_bf16_f32 v{O+p}, v{O+2*p}, v{O+2*p+1}")
    def emit(fl):
        for q in range(3):
            A(f"buffer_store_dwordx2 v[{O+2*q}:{O+2*q+1}], v{V_OO}, {WS}, s{T} offen offset:{512*q} {fl}")
        A("s_mov_b32 exec_hi, 0")
        A(f"buffer_store_dwordx2 v[{O+6}:{O+7}], v{V_OO}, {WS}, s{T} offen offset:1536 {fl}")
        A("s_mov_b64 exec, -1")
    local_stores(emit)

def wo_phase(tag, areg, final_possible):
    T = S_T
    G = 16
    ACC = 48
    B = 64
    AD = 96
    A(f"s_add_u32 s{T}, s{S_O}, s{S_RTO28}")
    A(f"s_add_u32 s{T}, s{T}, s{S_G}")
    A(f"s_add_u32 s{T+1}, s{T}, 4096")
    for g in range(4):
        A(f"v_add_u32 v{AD+g}, {L_O}, v{V_WG+g}")
    poll = f"L_{tag}_poll"
    A.label(poll)
    for i in range(7):
        so, im = (T, 1024 * i) if i < 4 else (T + 1, 1024 * (i - 4))
        A(f"buffer_load_dwordx4 v[{G+4*i}:{G+4*i+3}], v{V_L16}, {WS}, s{so} offen offset:{im} sc1")
    spin_check()
    A(f"v_mov_b32 v{V_CHK}, 0")
    for i in range(7):
        A(f"s_waitcnt vmcnt({6-i})")
        A(f"v_max3_u32 v{V_CHK}, v{V_CHK}, v{G+4*i}, v{G+4*i+1}")
        A(f"v_max3_u32 v{V_CHK}, v{V_CHK}, v{G+4*i+2}, v{G+4*i+3}")
    A(f"v_cmp_eq_u32 vcc, -1, v{V_CHK}")
    A(f"s_cbranch_vccnz {poll}")
    stamp(f'L:{tag}_got')
    for i in range(7):
        A(f"ds_write_b128 v{AD}, v[{G+4*i}:{G+4*i+3}] offset:{1024*i}")
    skip = f"L_{tag}_idle"
    A(f"s_cmp_ge_u32 s{S_CT}, 14")
    A(f"s_cbranch_scc1 {skip}")
    acc = f"v[{ACC}:{ACC+15}]"
    for i in range(7):
        mfma(acc, f"a[{areg+4*i}:{areg+4*i+3}]", f"v[{G+4*i}:{G+4*i+3}]", "0" if i == 0 else acc)
    A("s_waitcnt lgkmcnt(0)")
    A("s_barrier")
    def rd(st):
        g, i = divmod(st, 7)
        b = B + 4 * (st & 7)
        A(f"ds_read_b128 v[{b}:{b+3}], v{AD+g} offset:{1024*i}")
    for st in range(7, 14): rd(st)
    for st in range(7, 28):
        if st + 7 < 28:
            rd(st + 7)
            A("s_waitcnt lgkmcnt(7)")
        else:
            A(f"s_waitcnt lgkmcnt({27-st})")
        b = B + 4 * (st & 7)
        mfma(acc, f"a[{areg+4*st}:{areg+4*st+3}]", f"v[{b}:{b+3}]", acc)
    R = 16
    for r in range(8): A(f"v_accvgpr_read_b32 v{R+r}, a{A_XR+r}")
    for k in range(2):
        A(f"v_permlane32_swap_b32 v{R+4*k}, v{R+4*k+2}")
        A(f"v_permlane32_swap_b32 v{R+4*k+1}, v{R+4*k+3}")
    U = 24
    for p in range(8):
        A(f"v_lshlrev_b32 v{U+2*p}, 16, v{R+p}")
        A(f"v_and_b32 v{U+2*p+1}, 0xffff0000, v{R+p}")
    for r in range(0, 16, 2):
        A(f"v_pk_add_f32 v[{ACC+r}:{ACC+r+1}], v[{ACC+r}:{ACC+r+1}], v[{U+r}:{U+r+1}]")
    for p in range(8):
        A(f"v_cvt_pk_bf16_f32 v{R+p}, v{ACC+2*p}, v{ACC+2*p+1}")
    for k in range(2):
        A(f"v_permlane32_swap_b32 v{R+4*k}, v{R+4*k+2}")
        A(f"v_permlane32_swap_b32 v{R+4*k+1}, v{R+4*k+3}")
    if final_possible:
        nf = f"L_{tag}_notfinal"
        A(f"s_cmp_eq_u32 s{S_IT}, 0")
        A(f"s_cbranch_scc1 {nf}")
        set_srd(SRD_T, 56, 2048 * 896)
        A(f"v_and_b32 v{U}, 31, v{V_LANE}")
        A(f"v_mul_u32_u24 v{U}, 896, v{U}")
        A(f"v_lshrrev_b32 v{U+1}, 5, v{V_LANE}")
        A(f"v_lshl_add_u32 v{U}, v{U+1}, 4, v{U}")
        A(f"s_lshl_b32 s{T}, s{S_CT}, 6")
        A(f"s_add_u32 s{T}, s{T}, s{S_RTO28}")
        A("s_waitcnt lgkmcnt(0)")
        A(f"buffer_store_dwordx4 v[{R}:{R+3}], v{U}, {TS}, s{T} offen")
        A(f"buffer_store_dwordx4 v[{R+4}:{R+7}], v{U}, {TS}, s{T} offen offset:32")
        A("s_branch L_exit")
        A.label(nf)
    A(f"s_add_u32 s{T+2}, s{S_X}, {XF[1]-XF[0]}")
    x_pub_addr(T, T + 1, f"s{T+2}")
    Sm, Sq = U, U + 1
    A(f"v_mov_b32 v{Sm}, 0")
    A(f"v_mov_b32 v{Sq}, 0")
    A(f"v_mov_b32 v{U+4}, 0x3f803f80")
    def emit1(fl):
        A(f"buffer_store_dwordx4 v[{R}:{R+3}], v{V_L16}, {WS}, s{T} offen {fl}")
        A(f"buffer_store_dwordx4 v[{R+4}:{R+7}], v{V_L16}, {WS}, s{T} offen offset:1024 {fl}")
    local_stores(emit1)
    for p in range(8):
        A(f"v_dot2c_f32_bf16 v{Sm}, v{R+p}, v{U+4}")
        A(f"v_dot2c_f32_bf16 v{Sq}, v{R+p}, v{R+p}")
    A(f"v_mov_b32 v{U+2}, v{Sm}")
    A(f"v_mov_b32 v{U+3}, v{Sq}")
    A(f"v_permlane32_swap_b32 v{Sm}, v{U+2}")
    A(f"v_permlane32_swap_b32 v{Sq}, v{U+3}")
    A(f"v_add_f32 v{Sm}, v{Sm}, v{U+2}")
    A(f"v_add_f32 v{Sq}, v{Sq}, v{U+3}")
    A("s_mov_b32 exec_hi, 0")
    def emit2(fl):
        A(f"buffer_store_dwordx2 v[{Sm}:{Sq}], v{V_L8}, {WS}, s{T+1} offen {fl}")
    local_stores(emit2)
    A("s_mov_b64 exec, -1")
    for r in range(8): A(f"v_accvgpr_write_b32 a{A_XR+r}, v{R+r}")
    A(f"s_branch L_{tag}_done")
    A.label(skip)
    A("s_waitcnt lgkmcnt(0)")
    A("s_barrier")
    if final_possible:
        A(f"s_cmp_eq_u32 s{S_IT}, 1")
        A("s_cbranch_scc1 L_exit")
    A.label(f"L_{tag}_done")
    A(f"s_add_u32 s{S_X}, s{S_X}, {XF[1]-XF[0]}")
    A(f"s_add_u32 s{S_O}, s{S_O}, {OF[1]-OF[0]}")
    stamp(f'L:{tag}_done')

def layer_a():
    T = S_T
    A(f"s_mov_b32 s{S_C1}, {f32(LOG2E):#x}")
    A(f"s_mov_b32 s{S_EPS}, {f32(1e-6):#x}")
    qkv_kv_pass('a')
    load_w_image(WFB, [0, 1])
    norm_kv('a')
    stop_here('a_norm')
    phi(64, 96, 16, 32, 88)
    for u in range(2):
        D = 16 + 16 * u
        for j in range(2):
            mfma(f"v[{D}:{D+15}]", f"v[{96+8*u+4*j}:{96+8*u+4*j+3}]", f"a[{A_ID+4*j}:{A_ID+4*j+3}]", "0" if j == 0 else f"v[{D}:{D+15}]")
    for u in range(2):
        D = 16 + 16 * u
        for p in range(8):
            A(f"v_cvt_pk_bf16_f32 v{96+8*u+p}, v{D+2*p}, v{D+2*p+1}")
    for u in range(2):
        D = 16 + 16 * u
        for j in range(2):
            mfma(f"v[{D}:{D+15}]", f"v[{96+8*u+4*j}:{96+8*u+4*j+3}]", f"v[{72+4*j}:{72+4*j+3}]", "0" if j == 0 else f"v[{D}:{D+15}]")
    A(f"s_lshl_b32 s{T}, s{S_W}, 13")
    A(f"s_add_u32 s{T}, s{T}, {L_RED}")
    A(f"v_add_u32 v88, s{T}, v{V_L16}")
    A(f"s_lshl_b32 s{T}, s{S_W}, 11")
    A(f"s_add_u32 s{T}, s{T}, {L_RED}")
    A(f"v_add_u32 v89, s{T}, v{V_L16}")
    kvp_store_addr(90, T)
    A(f"s_add_u32 s{T}, s{T}, s{S_KVP}")
    for c in range(8):
        A(f"ds_write_b128 v88, v[{16+4*c}:{19+4*c}] offset:{1024*c}")
    A("s_waitcnt lgkmcnt(0)")
    A("s_barrier")
    for wv in range(4):
        for hh in range(2):
            r = 16 + 8 * wv + 4 * hh
            A(f"ds_read_b128 v[{r}:{r+3}], v89 offset:{8192*wv + 1024*hh}")
    A("s_waitcnt lgkmcnt(0)")
    for r in range(0, 8, 2):
        A(f"v_pk_add_f32 v[{16+r}:{17+r}], v[{16+r}:{17+r}], v[{24+r}:{25+r}]")
        A(f"v_pk_add_f32 v[{32+r}:{33+r}], v[{32+r}:{33+r}], v[{40+r}:{41+r}]")
    for r in range(0, 8, 2):
        A(f"v_pk_add_f32 v[{16+r}:{17+r}], v[{16+r}:{17+r}], v[{32+r}:{33+r}]")
    for hh in range(2):
        A(f"buffer_store_dwordx4 v[{16+4*hh}:{19+4*hh}], v90, {WS}, s{T} offen offset:{64*hh} sc1")
    stamp('L:a_kvp')
    stop_here('a_kvp')
    q_pass('a')
    load_w_image(WFB, [2])
    A(f"v_lshrrev_b32 v88, 3, v{V_LANE}")
    A("v_lshlrev_b32 v88, 9, v88")
    A(f"v_and_b32 v89, 7, v{V_LANE}")
    A("v_lshl_add_u32 v88, v89, 4, v88")
    A(f"s_lshl_b32 s{T}, s{S_H}, 17")
    A(f"s_lshl_b32 s{T+1}, s{S_RB}, 13")
    A(f"s_add_u32 s{T}, s{T}, s{T+1}")
    A(f"s_lshl_b32 s{T+1}, s{S_W}, 7")
    A(f"s_add_u32 s{T}, s{T}, s{T+1}")
    A(f"s_add_u32 s{T}, s{T}, s{S_KVP}")
    A(f"s_add_u32 s{T+1}, s{T}, 4096")
    A.label("L_hop1")
    A(f"buffer_load_dwordx4 v[16:19], v88, {WS}, s{T} offen sc1")
    A(f"buffer_load_dwordx4 v[20:23], v88, {WS}, s{T+1} offen sc1")
    spin_check()
    A("s_waitcnt vmcnt(0)")
    A("v_max3_u32 v24, v16, v17, v18")
    A("v_max3_u32 v24, v24, v19, v20")
    A("v_max3_u32 v24, v24, v21, v22")
    A("v_max_u32 v24, v24, v23")
    A("v_cmp_eq_u32 vcc, -1, v24")
    A("s_cbranch_vccnz L_hop1")
    A("v_pk_add_f32 v[16:17], v[16:17], v[20:21]")
    A("v_pk_add_f32 v[18:19], v[18:19], v[22:23]")
    for r in range(4):
        A(f"v_add_f32_dpp v{16+r}, v{16+r}, v{16+r} row_ror:8 row_mask:0xf bank_mask:0xf")
    for sw in ("v_permlane16_swap_b32", "v_permlane32_swap_b32"):
        for r in range(4): A(f"v_mov_b32 v{20+r}, v{16+r}")
        for r in range(4): A(f"{sw} v{16+r}, v{20+r}")
        A("v_pk_add_f32 v[16:17], v[16:17], v[20:21]")
        A("v_pk_add_f32 v[18:19], v[18:19], v[22:23]")
    A("v_cvt_pk_bf16_f32 v16, v16, v17")
    A("v_cvt_pk_bf16_f32 v17, v18, v19")
    A(f"v_and_b32 v20, 3, v{V_LANE}")
    A("v_lshlrev_b32 v20, 4, v20")
    A(f"v_bfe_u32 v21, v{V_LANE}, 2, 1")
    A("v_lshl_add_u32 v20, v21, 3, v20")
    A(f"s_lshl_b32 s{T+2}, s{S_H}, 12")
    A(f"s_add_u32 s{T+2}, s{T+2}, s{S_KVR}")
    A(f"s_lshl_b32 s{T}, s{S_RB}, 8")
    A(f"s_lshl_b32 s{T+1}, s{S_W}, 6")
    A(f"s_add_u32 s{T}, s{T}, s{T+1}")
    A(f"s_add_u32 s{T}, s{T}, s{T+2}")
    A("s_mov_b64 exec, 0xff")
    A(f"buffer_store_dwordx2 v[16:17], v20, {WS}, s{T} offen sc1")
    A("s_mov_b64 exec, -1")
    stamp('L:a_hop1')
    phi(80, 96, 16, 32, 88)
    A.label("L_hop2")
    for f in range(4):
        A(f"buffer_load_dwordx4 v[{48+4*f}:{51+4*f}], v{V_L16}, {WS}, s{T+2} offen offset:{1024*f} sc1")
    spin_check()
    A("s_waitcnt vmcnt(0)")
    A("v_max3_u32 v24, v48, v49, v50")
    for r in range(51, 63, 2):
        A(f"v_max3_u32 v24, v24, v{r}, v{r+1}")
    A("v_max_u32 v24, v24, v63")
    A("v_cmp_eq_u32 vcc, -1, v24")
    A("s_cbranch_vccnz L_hop2")
    stamp('L:a_hop2')
    for f in range(4):
        mfma("v[16:31]", f"v[{48+4*f}:{51+4*f}]", f"v[{96+4*f}:{99+4*f}]", "0" if f == 0 else "v[16:31]")
    o_publish(16)
    stop_here('a_o')
    lab = A.newlabel('b1')
    A(f"s_cmp_lg_u32 s{S_IT}, 0")
    A(f"s_cbranch_scc1 {lab}")
    barrier1_check()
    A.label(lab)
    wo_phase('woa', A_WOA, False)
    stop_here('a_wo')

def layer_b():
    T = S_T
    A(f"s_mov_b32 s{S_C2}, {f32(LOG2E * 28 ** -0.5):#x}")
    A(f"s_mov_b32 s{S_EPS}, 0")
    qkv_kv_pass('b')
    load_w_image(WFA, [0, 1])
    norm_kv('b')
    A(f"v_cndmask_b32 v70, v70, 0, {HF}")
    A(f"v_cndmask_b32 v71, v71, 0, {HF}")
    kvf_addr(T)
    A(f"s_add_u32 s{T+2}, s{T}, s{S_KF}")
    A(f"s_add_u32 s{T+3}, s{T}, s{S_VF}")
    A(f"buffer_store_dwordx4 v[64:67], v{V_L16}, {WS}, s{T+2} offen sc1")
    A(f"buffer_store_dwordx4 v[68:71], v{V_L16}, {WS}, s{T+2} offen offset:1024 sc1")
    A(f"buffer_store_dwordx4 v[72:75], v{V_L16}, {WS}, s{T+3} offen sc1")
    A(f"buffer_store_dwordx4 v[76:79], v{V_L16}, {WS}, s{T+3} offen offset:1024 sc1")
    A(f"s_lshl_b32 s{T+4}, s{S_W}, 11")
    A(f"s_add_u32 s{T+4}, s{T+4}, {L_V}")
    A(f"v_add_u32 v88, s{T+4}, v{V_L16}")
    A(f"ds_write_b128 v88, v[64:67] offset:{24576 + 16384}")
    A(f"ds_write_b128 v88, v[68:71] offset:{24576 + 16384 + 1024}")
    A(f"ds_write_b128 v88, v[72:75] offset:{16384}")
    A(f"ds_write_b128 v88, v[76:79] offset:{16384 + 1024}")
    stamp('L:b_kvpub')
    q_pass('b')
    lab = A.newlabel('nw')
    A(f"s_cmp_lg_u32 s{S_IT}, 0")
    A(f"s_cbranch_scc1 {lab}")
    load_w_image(WFA, [2])
    A.label(lab)
    A("v_mov_b32 v89, 0x3f80")
    A(f"v_cndmask_b32 v86, v86, v89, {HF}")
    A(f"v_cndmask_b32 v87, v87, 0, {HF}")
    stop_here('b_q')
    kvf_addr(T)
    NEG = 0xf149
    for which, sbase, ldsoff, R in (('k', S_KF, 24576, 16), ('v', S_VF, 0, 32)):
        for z in range(2):
            r = R + 8 * z
            miss, done, poll = (f"L_r{which}{z}_{x}" for x in ('miss', 'done', 'poll'))
            A(f"s_cmp_lt_u32 s{S_RB}, {2 - z}")
            A(f"s_cbranch_scc1 {miss}")
            A(f"s_add_u32 s{T+2}, s{T}, s{sbase}")
            A(f"s_sub_u32 s{T+2}, s{T+2}, {(8 - 4*z) * 16 * 2048}")
            A.label(poll)
            A(f"buffer_load_dwordx4 v[{r}:{r+3}], v{V_L16}, {WS}, s{T+2} offen sc1")
            A(f"buffer_load_dwordx4 v[{r+4}:{r+7}], v{V_L16}, {WS}, s{T+2} offen offset:1024 sc1")
            spin_check()
            A("s_waitcnt vmcnt(0)")
            A(f"v_max3_u32 v89, v{r}, v{r+1}, v{r+2}")
            A(f"v_max3_u32 v89, v89, v{r+3}, v{r+4}")
            A(f"v_max3_u32 v89, v89, v{r+5}, v{r+6}")
            A(f"v_max_u32 v89, v89, v{r+7}")
            A("v_cmp_eq_u32 vcc, -1, v89")
            A(f"s_cbranch_vccnz {poll}")
            A(f"s_branch {done}")
            A.label(miss)
            for i in range(8): A(f"v_mov_b32 v{r+i}, 0")
            if which == 'k':
                A(f"v_mov_b32 v89, {NEG:#x}")
                A(f"v_cndmask_b32 v{r+6}, 0, v89, {HF}")
            A.label(done)
        if which == 'v':
            A("s_barrier")
        for z in range(2):
            r = R + 8 * z
            A(f"ds_write_b128 v88, v[{r}:{r+3}] offset:{ldsoff + 8192*z}")
            A(f"ds_write_b128 v88, v[{r+4}:{r+7}] offset:{ldsoff + 8192*z + 1024}")
    A("s_waitcnt lgkmcnt(0)")
    A("s_barrier")
    stamp('L:b_remote')
    S = 96
    M = 48
    A(f"v_and_b32 v89, 31, v{V_LANE}")
    A(f"v_lshrrev_b32 v90, 5, v{V_LANE}")
    A("v_lshlrev_b32 v90, 2, v90")
    A("v_sub_u32 v89, v89, v90")
    A(f"v_mov_b32 v90, {f32(-1e30):#x}")
    for r in range(16):
        k0 = (r & 3) + 8 * (r >> 2)
        A(f"v_cmp_gt_i32 vcc, {k0}, v89")
        A(f"v_cndmask_b32 v{S+r}, v90, 0, vcc")
        A(f"v_cndmask_b32 v{S+128+r}, 0, v90, vcc")
    FB = 16
    def kread(j, base):
        b = FB + 8 * (j & 3)
        A(f"ds_read_b128 v[{b}:{b+3}], v88 offset:{base + 2048*j}")
        A(f"ds_read_b128 v[{b+4}:{b+7}], v88 offset:{base + 2048*j + 1024}")
    for j in range(3): kread(j, 24576)
    MX = 91
    for j in range(9):
        if j + 3 < 9:
            kread(j + 3, 24576)
            A("s_waitcnt lgkmcnt(6)")
        else:
            A(f"s_waitcnt lgkmcnt({2*(8-j)})")
        b = FB + 8 * (j & 3)
        d = f"v[{S+16*j}:{S+16*j+15}]"
        mfma(d, f"v[{b}:{b+3}]", "v[80:83]", d if j in (0, 8) else "0")
        mfma(d, f"v[{b+4}:{b+7}]", "v[84:87]", d)
        if j >= 1:
            p = S + 16 * (j - 1)
            for r in range(0, 16, 2):
                if j == 1 and r == 0: A(f"v_max_f32 v{MX}, v{p}, v{p+1}")
                else: A(f"v_max3_f32 v{MX}, v{MX}, v{p+r}, v{p+r+1}")
    for j in range(3): kread(j, 0)
    p = S + 128
    for r in range(0, 16, 2):
        A(f"v_max3_f32 v{MX}, v{MX}, v{p+r}, v{p+r+1}")
    A(f"v_mov_b32 v{MX+1}, v{MX}")
    A(f"v_permlane32_swap_b32 v{MX}, v{MX+1}")
    A(f"v_max_f32 v{MX}, v{MX}, v{MX+1}")
    A(f"v_mul_f32 v{MX+1}, s{S_C2}, v{MX}")
    A(f"v_sub_f32 v{MX+1}, 0, v{MX+1}")
    A(f"v_mov_b32 v{MX+3}, s{S_C2}")
    for r in range(0, 144, 2):
        A(f"v_pk_fma_f32 v[{S+r}:{S+r+1}], v[{S+r}:{S+r+1}], v[{MX+3}:{MX+4}], v[{MX+1}:{MX+2}] op_sel_hi:[1,0,0]")
    O = 48
    for j in range(9):
        p = S + 16 * j
        for r in range(16): A(f"v_exp_f32 v{p+r}, v{p+r}")
        for q in range(8): A(f"v_cvt_pk_bf16_f32 v{p+q}, v{p+2*q}, v{p+2*q+1}")
        if j + 3 < 9:
            kread(j + 3, 0)
            A("s_waitcnt lgkmcnt(6)")
        else:
            A(f"s_waitcnt lgkmcnt({2*(8-j)})")
        b = FB + 8 * (j & 3)
        mfma(f"v[{O}:{O+15}]", f"v[{b}:{b+3}]", f"v[{p}:{p+3}]", "0" if j == 0 else f"v[{O}:{O+15}]")
        mfma(f"v[{O}:{O+15}]", f"v[{b+4}:{b+7}]", f"v[{p+4}:{p+7}]", f"v[{O}:{O+15}]")
    o_publish(O)
    stamp('L:b_attn')
    stop_here('b_o')
    wo_phase('wob', A_WOB, True)

def main():
    K = NAME + "_kernel"
    setup()
    prep()
    poison_first()
    stop_here('prep')
    barrier0()
    load_w_image(WFA, [0, 1, 2])
    load_consts()
    poison_rest()
    load_wo(WOA, A_WOA)
    load_wo(WOB, A_WOB)
    load_resid0()
    A(f"s_mov_b32 s{S_X}, {XF[0]}")
    A(f"s_mov_b32 s{S_O}, {OF[0]}")
    A(f"s_mov_b32 s{S_KVP}, {KVP[0]}")
    A(f"s_mov_b32 s{S_KVR}, {KVR[0]}")
    A(f"s_mov_b32 s{S_KF}, {KF[0]}")
    A(f"s_mov_b32 s{S_VF}, {VF[0]}")
    stamp('pre_loop')
    A.label("L_loop")
    A("s_nop 15")
    layer_a()
    layer_b()
    stop_here('b_wo')
    A(f"s_mov_b32 s{S_KVP}, {KVP[1]}")
    A(f"s_mov_b32 s{S_KVR}, {KVR[1]}")
    A(f"s_mov_b32 s{S_KF}, {KF[1]}")
    A(f"s_mov_b32 s{S_VF}, {VF[1]}")
    A(f"s_mov_b32 s{S_IT}, 1")
    A("s_branch L_loop")
    A.label("L_exit")
    if OPT['stamps']:
        A("s_mov_b64 exec, -1")
        A(f"s_memtime s[{S_T+8}:{S_T+9}]")
        A("s_waitcnt lgkmcnt(0)")
        A(f"s_mov_b32 s{S_STAMP+NSTAMP-1}, s{S_T+8}")
        A(f"s_mov_b32 s{S_STAMP+NSTAMP-2}, s{S_SPIN}")
        A(f"s_mov_b32 s{S_STAMP+NSTAMP-3}, s{S_FAST}")
        A("v_mov_b32 v16, 0")
        for i in range(NSTAMP):
            A(f"v_writelane_b32 v16, s{S_STAMP+i}, {i}")
        A(f"s_lshl_b32 s{S_T}, s{S_ID}, 2")
        A(f"s_add_u32 s{S_T}, s{S_T}, s{S_W}")
        A(f"s_lshl_b32 s{S_T}, s{S_T}, 8")
        A(f"s_add_u32 s{S_T}, s{S_T}, {DBG}")
        A(f"v_lshlrev_b32 v17, 2, v{V_LANE}")
        A(f"buffer_store_dword v16, v17, {WS}, s{S_T} offen")
    A.label("L_end")
    A("s_endpgm")

    hdr = open("cdna_kernels/" + NAME + ".s.ref").read().split('\n')
    head = [l for l in hdr if l.startswith(';') and '@launch' not in l and 'Override' not in l and 'grid=ceil' not in l]
    out = '\n'.join(head) + '\n'
    out += f"; @launch grid=(256,1,1) block=(256,1,1) lds={LDS_BYTES}\n"
    out += '.amdgcn_target "amdgcn-amd-amdhsa--gfx950"\n.text\n'
    out += f".globl {K}\n.p2align 8\n.type {K},@function\n{K}:\n"
    out += A.text()
    out += f""".section .rodata,"a"
.p2align 6
.amdhsa_kernel {K}
  .amdhsa_next_free_vgpr 512
  .amdhsa_next_free_sgpr 102
  .amdhsa_accum_offset 256
  .amdhsa_group_segment_fixed_size 0
  .amdhsa_kernarg_size 80
  .amdhsa_user_sgpr_count 2
  .amdhsa_user_sgpr_kernarg_segment_ptr 1
  .amdhsa_system_sgpr_workgroup_id_x 1
.end_amdhsa_kernel
"""
    open(sys.argv[1], 'w').write(out)
    import json
    json.dump(dict(WFA=WFA, WFB=WFB, WOA=WOA, WOB=WOB, XF=XF, XST=XST, OF=OF, KVP=KVP, KVR=KVR, KF=KF, VF=VF, DBG=DBG,
                   WS_USED=WS_USED, stamps=stamp_names, NSTAMP=NSTAMP), open(sys.argv[1] + '.json', 'w'))
    print("instructions:", sum(1 for i in A.out if i.cls != 'label'), "nops added:", A.nops_added, "ws used:", WS_USED)

main()
```
